```python
import torch

def _softmax(x, axis=-1):
    return torch.softmax(x, dim=axis)
def _gelu(x):
    return torch.nn.functional.gelu(x, approximate="tanh")
def _silu(x):
    return torch.nn.functional.silu(x)
def _sigmoid(x):
    return torch.sigmoid(x)
def _layernorm(x, axis=-1, eps=1e-5):
    m = x.mean(dim=axis, keepdim=True)
    v = x.var(dim=axis, keepdim=True, unbiased=False)
    return (x - m) / torch.sqrt(v + eps)
def _scatter_add(tgt, idx, src, axis=0):
    return tgt.clone().index_add_(axis, idx, src)
def _segment_sum(src, seg, n):
    out = torch.zeros((n,) + src.shape[1:], dtype=src.dtype)
    return out.index_add_(0, seg, src)
def _pad(x, pw):
    flat = tuple(v for pair in reversed(pw) for v in pair)
    return torch.nn.functional.pad(x, flat)

kernel_name = 'standalone__self_sup_conv_stem_hubert__speech'

def setup_inputs():

    _w = (lambda a: (lambda t: t.to(torch.bfloat16) if t.is_floating_point() else t)(torch.as_tensor(a)))
    B, T, D, K = 2, 16000, 512, 5
    scale = (1.0 / (K * D)) ** 0.5
    return {
        "x": _w((lambda *s: torch.randn(*s, dtype=torch.bfloat16) * 0.05)(B, T, D)),
        "w": _w((lambda *s: torch.randn(*s, dtype=torch.bfloat16) * 0.05)(K, D, D) * scale),
        "b": _w((lambda *s: torch.randn(*s, dtype=torch.bfloat16) * 0.05)(D) * 0.1),
        "gamma": _w(torch.ones((D,), dtype=float)),
        "beta": _w(torch.zeros((D,), dtype=float)),
    }

def reference(x, w, b, gamma, beta):
    B, T, D = x.shape
    K = w.shape[0]
    s = 2
    L = (T - K) // s + 1
    y = torch.einsum('blc,cd->bld', x[:, 0 : s * L : s, :], w[0])
    for i in range(1, K):
        y = y + torch.einsum('blc,cd->bld', x[:, i : i + s * L : s, :], w[i])
    y = y + b[None, None, :]
    mu = y.mean(1, keepdims=True)
    var = ((y - mu) ** 2).mean(1, keepdims=True)
    yn = (y - mu) / torch.sqrt(var + 1e-5)
    yn = yn * gamma[None, None, :] + beta[None, None, :]
    return _gelu(yn)
```

```python
import sys

NAME = "standalone__self_sup_conv_stem_hubert__speech"


class G:
    def __init__(self):
        self.lines = []

    def __call__(self, s):
        self.lines.append("    " + s)

    def label(self, l):
        self.lines.append(l + ":")

    def raw(self, s):
        self.lines.append(s)

    def text(self):
        return "\n".join(self.lines) + "\n"


Y_ROWS = 8192
WS_Y = 0
WS_PART = 2 * Y_ROWS * 1024
WS_PARAM = WS_PART + 64 * 512 * 8
WS_SIZE = WS_PARAM + 2 * 512 * 8

X_BYTES = 2 * 16000 * 1024
W_BYTES = 5 * 512 * 1024
OUT_BYTES = 2 * 7998 * 1024
NVALID = 7998

XE = 0
XO = 33792
WE = 67584
WO = 116736
LDS_TOTAL = 149504

V_TID = 0
V_OFFX = 8
V_OFFW = 9
FRAG = [dict(A=[16, 20], B=[24, 28]), dict(A=[32, 36], B=[40, 44])]
V_A = 48
V_B = 60
ACC = 64
TMP = 128
K1_VGPRS = 176


def acc(mb, nbl):
    return ACC + (mb * 2 + nbl) * 16


def kernel_desc(g, name, vgprs, sgprs=96):
    g.raw(".section .rodata,\"a\"")
    g.raw(".p2align 6")
    g.raw(".amdhsa_kernel %s" % name)
    g.raw("  .amdhsa_next_free_vgpr %d" % vgprs)
    g.raw("  .amdhsa_next_free_sgpr %d" % sgprs)
    g.raw("  .amdhsa_accum_offset %d" % ((vgprs + 3) // 4 * 4))
    g.raw("  .amdhsa_group_segment_fixed_size 0")
    g.raw("  .amdhsa_kernarg_size 64")
    g.raw("  .amdhsa_user_sgpr_count 2")
    g.raw("  .amdhsa_user_sgpr_kernarg_segment_ptr 1")
    g.raw("  .amdhsa_system_sgpr_workgroup_id_x 1")
    g.raw(".end_amdhsa_kernel")
    g.raw(".text")


def kernel_head(g, name):
    g.raw(".globl %s" % name)
    g.raw(".p2align 8")
    g.raw(".type %s,@function" % name)
    g.label(name)


def srd(g, d, base_lo, size):
    g("s_mov_b32 s%d, s%d" % (d, base_lo))
    g("s_and_b32 s%d, s%d, 0xffff" % (d + 1, base_lo + 1))
    g("s_mov_b32 s%d, %d" % (d + 2, size))
    g("s_mov_b32 s%d, 0x00020000" % (d + 3))


def gen_k1(g):
    name = NAME + "_gemm_kernel"
    kernel_head(g, name)
    g("s_cmp_ge_u32 s2, 256")
    g("s_cbranch_scc1 L_k1_end")
    g("s_load_dwordx4 s[28:31], s[0:1], 0")
    g("s_load_dwordx2 s[32:33], s[0:1], 16")
    g("s_load_dwordx2 s[34:35], s[0:1], 56")
    g("s_and_b32 s3, s2, 7")
    g("s_lshr_b32 s27, s2, 3")
    g("s_and_b32 s19, s27, 3")
    g("s_lshr_b32 s27, s27, 2")
    g("s_lshl_b32 s20, s3, 3")
    g("s_add_u32 s20, s20, s27")
    g("s_lshr_b32 s21, s20, 5")
    g("s_and_b32 s22, s20, 31")
    g("v_lshrrev_b32 v1, 6, v0")
    g("s_nop 1")
    g("v_readfirstlane_b32 s16, v1")
    g("s_nop 3")
    g("s_lshr_b32 s17, s16, 1")
    g("s_and_b32 s18, s16, 1")
    g("s_lshl_b32 s25, s16, 10")
    g("s_mul_i32 s36, s21, 16384000")
    g("s_lshl_b32 s37, s22, 19")
    g("s_add_u32 s36, s36, s37")
    g("s_lshl_b32 s37, s16, 14")
    g("s_add_u32 s38, s36, s37")
    g("s_lshl_b32 s39, s16, 12")
    g("s_lshl_b32 s37, s19, 8")
    g("s_add_u32 s39, s39, s37")
    g("s_mov_b32 s42, 0")
    g("s_mov_b32 s43, 0")
    g("s_waitcnt lgkmcnt(0)")
    srd(g, 4, 28, X_BYTES)
    srd(g, 8, 30, W_BYTES)
    srd(g, 12, 34, WS_SIZE)

    g("v_and_b32 v1, 63, v0")
    g("s_lshl_b32 s3, s18, 2")
    g("v_lshrrev_b32 v2, 4, v1")
    g("v_add_u32 v2, s3, v2")
    g("v_and_b32 v3, 7, v1")
    g("v_xor_b32 v3, v3, v2")
    g("v_lshlrev_b32 v3, 4, v3")
    g("v_lshrrev_b32 v4, 3, v1")
    g("v_lshlrev_b32 v4, 11, v4")
    g("v_add_u32 v%d, v3, v4" % V_OFFX)
    g("v_lshrrev_b32 v2, 4, v1")
    g("v_and_b32 v3, 15, v1")
    g("v_lshrrev_b32 v4, 2, v3")
    g("v_xor_b32 v4, v4, v2")
    g("v_lshlrev_b32 v4, 6, v4")
    g("v_lshlrev_b32 v5, 10, v2")
    g("v_add_u32 v4, v4, v5")
    g("v_and_b32 v5, 3, v1")
    g("v_lshlrev_b32 v5, 4, v5")
    g("v_add_u32 v%d, v4, v5" % V_OFFW)
    g("v_and_b32 v2, 31, v1")
    g("v_lshrrev_b32 v3, 5, v1")
    g("s_lshl_b32 s3, s17, 13")
    for sh in range(3):
        g("v_add_u32 v4, %d, v2" % sh)
        g("v_lshrrev_b32 v5, 1, v4")
        g("v_and_b32 v5, 7, v5")
        g("v_lshlrev_b32 v4, 7, v4")
        g("v_add_u32 v4, s3, v4")
        for kk in range(4):
            g("v_add_u32 v6, %d, v3" % (2 * kk))
            g("v_xor_b32 v6, v6, v5")
            g("v_lshlrev_b32 v6, 4, v6")
            g("v_add_u32 v%d, v4, v6" % (V_A + sh * 4 + kk))
    g("v_and_b32 v2, 15, v1")
    g("v_lshrrev_b32 v4, 2, v2")
    g("v_lshlrev_b32 v5, 3, v3")
    g("v_add_u32 v5, v5, v4")
    g("v_lshlrev_b32 v5, 8, v5")
    g("v_lshrrev_b32 v6, 4, v1")
    g("v_and_b32 v6, 1, v6")
    g("v_lshlrev_b32 v6, 5, v6")
    g("v_add_u32 v5, v5, v6")
    g("v_and_b32 v6, 3, v2")
    g("v_lshlrev_b32 v6, 3, v6")
    g("v_add_u32 v5, v5, v6")
    g("s_lshl_b32 s3, s18, 1")
    for nbl in range(2):
        g("s_add_u32 s27, s3, %d" % nbl)
        g("v_xor_b32 v6, s27, v4")
        g("v_lshlrev_b32 v6, 6, v6")
        g("v_add_u32 v6, v6, v5")
        g("v_add_u32 v%d, %d, v6" % (V_B + 0 * 2 + nbl, WE))
        g("v_add_u32 v%d, %d, v6" % (V_B + 1 * 2 + nbl, WO))
    g("s_lshl_b32 s3, s19, 7")
    g("s_lshl_b32 s27, s18, 6")
    g("s_add_u32 s3, s3, s27")
    g("v_and_b32 v2, 31, v1")
    g("v_add_u32 v2, s3, v2")
    g("v_lshlrev_b32 v2, 1, v2")
    g("global_load_ushort v10, v2, s[32:33]")
    g("global_load_ushort v11, v2, s[32:33] offset:64")
    dma_stage(g, par=0, first=True)
    for r in range(16):
        g("v_mov_b32 v%d, 0" % (FRAG[1]["A"][0] + r))
    g("s_waitcnt vmcnt(%d)" % (dma_count(0)))
    g("v_lshlrev_b32 v10, 16, v10")
    g("v_lshlrev_b32 v11, 16, v11")
    for mb in range(2):
        for nbl in range(2):
            for j in range(16):
                g("v_mov_b32 v%d, v%d" % (acc(mb, nbl) + j, 10 + nbl))
    g("s_waitcnt vmcnt(0)")
    g("s_barrier")

    g.label("L_k1_loop")
    stage(g, par=0)
    stage(g, par=1)
    g("s_add_u32 s42, s42, 128")
    g("s_add_u32 s43, s43, 65536")
    g("s_cmp_lt_u32 s42, 1024")
    g("s_cbranch_scc1 L_k1_loop")
    mfmas(g, 1)
    k1_epilogue(g)
    g.label("L_k1_end")
    g("s_endpgm")
    kernel_desc(g, name, K1_VGPRS)


def dma_count(par):
    return 4 + (6 if par == 0 else 4)


def dma_list(par):
    XB = XE if par == 0 else XO
    WB = WE if par == 0 else WO
    out = []
    for i in range(4):
        out.append(("X", XB + 8192 * i, 131072 * i))
    nts = 3 if par == 0 else 2
    for ts in range(nts):
        for i2 in range(2):
            out.append(("W", WB + 16384 * ts + 8192 * i2, 1048576 * ts + 32768 * i2))
    return out


def dma_setup(g, par, nxt):
    g("s_add_u32 s23, s38, s42")
    g("s_add_u32 s24, s39, s43")
    c = par * 1024 + (128 if nxt else 0)
    if c:
        g("s_add_u32 s23, s23, %d" % c)
    c = par * 524288 + (65536 if nxt else 0)
    if c:
        g("s_add_u32 s24, s24, %d" % c)


def dma_one(g, item):
    kind, m0c, soc = item
    g("s_add_u32 m0, s25, %d" % m0c)
    if kind == "X":
        g("s_add_u32 s26, s23, %d" % soc)
        g("buffer_load_dwordx4 v%d, s[4:7], s26 offen lds" % V_OFFX)
    else:
        g("s_add_u32 s26, s24, %d" % soc)
        g("buffer_load_dwordx4 v%d, s[8:11], s26 offen lds" % V_OFFW)


def dma_extra(g, par, tag):
    XB = XE if par == 0 else XO
    g("s_cmp_lg_u32 s16, 0")
    g("s_cbranch_scc1 L_noextra_%s" % tag)
    g("s_mov_b32 m0, %d" % (XB + 32768))
    g("s_add_u32 s26, s23, %d" % 524288)
    g("buffer_load_dwordx4 v%d, s[4:7], s26 offen lds" % V_OFFX)
    g.label("L_noextra_%s" % tag)


_tagc = [0]


def dma_stage(g, par, first=False):
    dma_setup(g, par, False)
    for it in dma_list(par):
        dma_one(g, it)
    _tagc[0] += 1
    dma_extra(g, par, "t%d" % _tagc[0])


def reads(g, par, step, st):
    ts, kk = divmod(step, 4)
    XB = XE if par == 0 else XO
    for mb in range(2):
        a = FRAG[st]["A"][mb]
        g("ds_read_b128 v[%d:%d], v%d offset:%d" % (a, a + 3, V_A + ts * 4 + kk, XB + mb * 4096))
    for nbl in range(2):
        b = FRAG[st]["B"][nbl]
        for h in range(2):
            g("ds_read_b64_tr_b16 v[%d:%d], v%d offset:%d" % (b + 2 * h, b + 2 * h + 1, V_B + par * 2 + nbl,
                                                             ts * 16384 + kk * 4096 + h * 1024))


def mfmas(g, st):
    for nbl in range(2):
        for mb in range(2):
            a = FRAG[st]["A"][mb]
            b = FRAG[st]["B"][nbl]
            c = acc(mb, nbl)
            g("v_mfma_f32_32x32x16_bf16 v[%d:%d], v[%d:%d], v[%d:%d], v[%d:%d]" % (c, c + 15, a, a + 3, b, b + 3, c, c + 15))


def stage(g, par):
    S = 12 if par == 0 else 8
    npar = 1 - par
    _tagc[0] += 1
    tag = "t%d" % _tagc[0]
    items = dma_list(npar)
    reads(g, par, 0, 0)
    mfmas(g, 1)
    if par == 1:
        g("s_cmp_eq_u32 s42, 896")
        g("s_cbranch_scc1 L_nodma_%s" % tag)
    dma_setup(g, npar, par == 1)
    for it in items:
        dma_one(g, it)
    dma_extra(g, npar, tag)
    if par == 1:
        g.label("L_nodma_%s" % tag)
    for s in range(S):
        if s + 1 < S:
            reads(g, par, s + 1, (s + 1) % 2)
            g("s_waitcnt lgkmcnt(6)")
            mfmas(g, s % 2)
        else:
            g("s_waitcnt vmcnt(0) lgkmcnt(0)")
            g("s_barrier")


def k1_epilogue(g):
    T = TMP
    g("s_nop 15")
    g("s_nop 7")
    g("v_and_b32 v1, 63, v0")
    g("v_lshrrev_b32 v3, 5, v1")
    g("s_cmp_lg_u32 s22, 31")
    g("s_cbranch_scc1 L_k1_noedge")
    g("s_lshl_b32 s3, s17, 6")
    g("v_lshlrev_b32 v4, 2, v3")
    g("v_add_u32 v4, s3, v4")
    g("s_lshl_b32 s27, s22, 8")
    g("s_sub_u32 s27, %d, s27" % NVALID)
    for mb in range(2):
        for j in range(16):
            c = mb * 32 + 8 * (j // 4) + (j % 4)
            g("v_add_u32 v5, %d, v4" % c)
            g("v_cmp_gt_u32 vcc, s27, v5")
            g("s_nop 1")
            for nbl in range(2):
                r = acc(mb, nbl) + j
                g("v_cndmask_b32 v%d, 0, v%d, vcc" % (r, r))
    g.label("L_k1_noedge")
    for nbl in range(2):
        s0, q0 = T + nbl * 8, T + nbl * 8 + 1
        s1, q1 = T + nbl * 8 + 2, T + nbl * 8 + 3
        regs = [acc(mb, nbl) + j for mb in range(2) for j in range(16)]
        g("v_mov_b32 v%d, v%d" % (s0, regs[0]))
        g("v_mul_f32 v%d, v%d, v%d" % (q0, regs[0], regs[0]))
        g("v_mov_b32 v%d, v%d" % (s1, regs[1]))
        g("v_mul_f32 v%d, v%d, v%d" % (q1, regs[1], regs[1]))
        for i, r in enumerate(regs[2:]):
            if i % 2 == 0:
                g("v_add_f32 v%d, v%d, v%d" % (s0, s0, r))
                g("v_fmac_f32 v%d, v%d, v%d" % (q0, r, r))
            else:
                g("v_add_f32 v%d, v%d, v%d" % (s1, s1, r))
                g("v_fmac_f32 v%d, v%d, v%d" % (q1, r, r))
        g("v_add_f32 v%d, v%d, v%d" % (s0, s0, s1))
        g("v_add_f32 v%d, v%d, v%d" % (q0, q0, q1))
    g("s_lshl_b32 s3, s17, 7")
    g("s_lshl_b32 s27, s18, 6")
    g("s_add_u32 s3, s3, s27")
    g("v_and_b32 v2, 31, v1")
    g("v_add_u32 v2, s3, v2")
    g("v_lshlrev_b32 v2, 1, v2")
    g("v_add_u32 v2, v2, v3")
    g("v_lshlrev_b32 v2, 3, v2")
    g("ds_write_b64 v2, v[%d:%d]" % (T, T + 1))
    g("ds_write_b64 v2, v[%d:%d] offset:512" % (T + 8, T + 9))
    g("s_lshl_b32 s3, s21, 13")
    g("s_lshl_b32 s27, s22, 8")
    g("s_add_u32 s3, s3, s27")
    g("s_lshl_b32 s27, s17, 6")
    g("s_add_u32 s3, s3, s27")
    g("s_lshl_b32 s44, s3, 10")
    g("v_lshlrev_b32 v4, 2, v3")
    g("v_and_b32 v5, 1, v1")
    g("v_add_u32 v4, v4, v5")
    g("v_lshlrev_b32 v4, 10, v4")
    g("s_lshl_b32 s3, s19, 7")
    g("s_lshl_b32 s27, s18, 6")
    g("s_add_u32 s3, s3, s27")
    g("v_and_b32 v6, 30, v1")
    g("v_add_u32 v6, s3, v6")
    g("v_lshlrev_b32 v6, 1, v6")
    g("v_add_u32 v4, v4, v6")
    g("v_mov_b32 v7, 0x05040100")
    g("v_mov_b32 v12, 0x03020706")
    g("v_cmp_eq_u32 vcc, 1, v5")
    g("s_nop 1")
    g("v_cndmask_b32 v7, v7, v12, vcc")
    k = 0
    for mb in range(2):
        for jj in range(4):
            g("s_add_u32 s45, s44, %d" % (mb * 32768 + jj * 8192))
            for nbl in range(2):
                for j2 in (0, 2):
                    r = acc(mb, nbl) + jj * 4 + j2
                    p = T + 16 + (k % 8) * 2
                    n = p + 1
                    k += 1
                    g("v_cvt_pk_bf16_f32 v%d, v%d, v%d" % (p, r, r + 1))
                    g("s_nop 1")
                    g("v_mov_b32_dpp v%d, v%d quad_perm:[1,0,3,2] row_mask:0xf bank_mask:0xf" % (n, p))
                    g("v_perm_b32 v%d, v%d, v%d, v7" % (p, n, p))
                    g("buffer_store_dword v%d, v4, s[12:15], s45 offen offset:%d" % (p, j2 * 1024 + nbl * 64))
    g("s_waitcnt lgkmcnt(0)")
    g("s_barrier")
    g("s_cmp_ge_u32 s16, 2")
    g("s_cbranch_scc1 L_k1_end")
    g("v_lshlrev_b32 v2, 4, v0")
    for wr in range(4):
        g("ds_read_b128 v[%d:%d], v2 offset:%d" % (T + 32 + wr * 4, T + 35 + wr * 4, wr * 2048))
    g("s_waitcnt lgkmcnt(0)")
    for wr in range(4):
        b = T + 32 + wr * 4
        if wr == 0:
            g("v_add_f32 v%d, v%d, v%d" % (T, b, b + 2))
            g("v_add_f32 v%d, v%d, v%d" % (T + 1, b + 1, b + 3))
        else:
            g("v_add_f32 v%d, v%d, v%d" % (b, b, b + 2))
            g("v_add_f32 v%d, v%d, v%d" % (b + 1, b + 1, b + 3))
            g("v_add_f32 v%d, v%d, v%d" % (T, T, b))
            g("v_add_f32 v%d, v%d, v%d" % (T + 1, T + 1, b + 1))
    g("s_lshl_b32 s3, s20, 9")
    g("s_lshl_b32 s27, s19, 7")
    g("s_add_u32 s3, s3, s27")
    g("s_lshl_b32 s3, s3, 3")
    g("s_add_u32 s3, s3, %d" % WS_PART)
    g("v_lshlrev_b32 v2, 3, v0")
    g("buffer_store_dwordx2 v[%d:%d], v2, s[12:15], s3 offen" % (T, T + 1))


def gen_k15(g):
    name = NAME + "_stats_kernel"
    kernel_head(g, name)
    g("s_cmp_ge_u32 s2, 4")
    g("s_cbranch_scc1 L_k15_end")
    g("s_load_dwordx4 s[28:31], s[0:1], 24")
    g("s_load_dwordx2 s[34:35], s[0:1], 56")
    g("s_lshl_b32 s3, s2, 8")
    g("v_add_u32 v1, s3, v0")
    g("v_and_b32 v2, 511, v1")
    g("v_lshrrev_b32 v3, 9, v1")
    g("v_lshlrev_b32 v3, 17, v3")
    g("v_lshl_add_u32 v3, v2, 3, v3")
    g("s_waitcnt lgkmcnt(0)")
    srd(g, 12, 34, WS_SIZE)
    for lt in range(32):
        g("s_mov_b32 s3, %d" % (WS_PART + lt * 4096))
        g("buffer_load_dwordx2 v[%d:%d], v3, s[12:15], s3 offen" % (16 + 2 * lt, 17 + 2 * lt))
    g("v_lshlrev_b32 v4, 1, v2")
    g("global_load_ushort v5, v4, s[28:29]")
    g("global_load_ushort v6, v4, s[30:31]")
    g("s_waitcnt vmcnt(0)")
    for lt in range(1, 32):
        g("v_add_f32 v16, v16, v%d" % (16 + 2 * lt))
        g("v_add_f32 v17, v17, v%d" % (17 + 2 * lt))
    g("s_mov_b32 s3, 0x%08x" % f32bits(1.0 / NVALID))
    g("v_mul_f32 v16, s3, v16")
    g("v_mul_f32 v17, s3, v17")
    g("v_fma_f32 v17, -v16, v16, v17")
    g("v_max_f32 v17, 0, v17")
    g("s_mov_b32 s3, 0x%08x" % f32bits(1e-5))
    g("v_add_f32 v17, s3, v17")
    g("v_rsq_f32 v17, v17")
    g("v_lshlrev_b32 v5, 16, v5")
    g("v_lshlrev_b32 v6, 16, v6")
    g("s_nop 0")
    g("v_mul_f32 v18, v5, v17")
    g("v_fma_f32 v19, -v16, v18, v6")
    g("v_lshlrev_b32 v4, 3, v1")
    g("s_mov_b32 s3, %d" % WS_PARAM)
    g("buffer_store_dwordx2 v[18:19], v4, s[12:15], s3 offen")
    g.label("L_k15_end")
    g("s_endpgm")
    kernel_desc(g, name, 88)


def f32bits(x):
    import struct
    return struct.unpack("<I", struct.pack("<f", x))[0]


K2_ROWS = 16


def gen_k2(g):
    name = NAME + "_norm_kernel"
    wgs_per_b = (NVALID + K2_ROWS - 1) // K2_ROWS
    kernel_head(g, name)
    g("s_cmp_ge_u32 s2, %d" % (2 * wgs_per_b))
    g("s_cbranch_scc1 L_k2_end")
    g("s_load_dwordx2 s[32:33], s[0:1], 40")
    g("s_load_dwordx2 s[34:35], s[0:1], 56")
    g("s_cmp_ge_u32 s2, %d" % wgs_per_b)
    g("s_cselect_b32 s21, 1, 0")
    g("s_mul_i32 s3, s21, %d" % wgs_per_b)
    g("s_sub_u32 s22, s2, s3")
    g("v_lshrrev_b32 v1, 6, v0")
    g("s_nop 1")
    g("v_readfirstlane_b32 s16, v1")
    g("s_nop 3")
    g("s_lshl_b32 s23, s22, 4")
    g("s_lshl_b32 s3, s16, 2")
    g("s_add_u32 s23, s23, s3")
    g("v_and_b32 v1, 63, v0")
    g("v_lshlrev_b32 v2, 4, v1")
    g("s_waitcnt lgkmcnt(0)")
    srd(g, 12, 34, WS_SIZE)
    srd(g, 8, 32, OUT_BYTES)
    g("s_lshl_b32 s3, s21, 12")
    g("s_add_u32 s3, s3, %d" % WS_PARAM)
    g("v_lshlrev_b32 v3, 6, v1")
    for i in range(4):
        g("buffer_load_dwordx4 v[%d:%d], v3, s[12:15], s3 offen offset:%d" % (16 + 4 * i, 19 + 4 * i, 16 * i))
    g("s_lshl_b32 s24, s21, 13")
    g("s_add_u32 s24, s24, s23")
    g("s_lshl_b32 s24, s24, 10")
    g("s_mul_i32 s25, s21, %d" % NVALID)
    g("s_add_u32 s25, s25, s23")
    g("s_lshl_b32 s25, s25, 10")
    for p in range(4):
        g("s_add_u32 s3, s24, %d" % (p * 1024))
        g("buffer_load_dwordx4 v[%d:%d], v2, s[12:15], s3 offen" % (32 + 4 * p, 35 + 4 * p))
    g("s_mov_b32 s26, 0x%08x" % f32bits(-2.0 * 1.4426950408889634 * 0.7978845608028654))
    g("s_mov_b32 s27, 0x%08x" % f32bits(-2.0 * 1.4426950408889634 * 0.7978845608028654 * 0.044715))
    g("s_mov_b32 s28, 0xffff0000")
    g("v_mov_b32 v81, s26")
    for p in range(4):
        g("s_waitcnt vmcnt(%d)" % (3 - p))
        d = 32 + 4 * p
        o = 48 + 4 * (p % 2)
        for i in range(4):
            lo, hi = 64 + 2 * i, 65 + 2 * i
            g("v_lshlrev_b32 v%d, 16, v%d" % (lo, d + i))
            g("v_and_b32 v%d, s28, v%d" % (hi, d + i))
        for e in range(8):
            v = 64 + e
            t = 72 + e
            g("v_fma_f32 v%d, v%d, v%d, v%d" % (v, v, 16 + 2 * e, 17 + 2 * e))
        for e in range(8):
            v = 64 + e
            t = 72 + e
            g("v_mul_f32 v%d, v%d, v%d" % (t, v, v))
        for e in range(8):
            v = 64 + e
            t = 72 + e
            g("v_fma_f32 v%d, v%d, s27, v81" % (t, t))
        for e in range(8):
            v = 64 + e
            t = 72 + e
            g("v_mul_f32 v%d, v%d, v%d" % (t, t, v))
        for e in range(8):
            t = 72 + e
            g("v_exp_f32 v%d, v%d" % (t, t))
        for e in range(8):
            t = 72 + e
            g("v_add_f32 v%d, 1.0, v%d" % (t, t))
        for e in range(8):
            t = 72 + e
            g("v_rcp_f32 v%d, v%d" % (t, t))
        for e in range(8):
            v = 64 + e
            t = 72 + e
            g("v_mul_f32 v%d, v%d, v%d" % (v, v, t))
        for i in range(4):
            g("v_cvt_pk_bf16_f32 v%d, v%d, v%d" % (o + i, 64 + 2 * i, 65 + 2 * i))
        g("s_add_u32 s3, s23, %d" % p)
        g("s_cmp_ge_u32 s3, %d" % NVALID)
        g("s_cbranch_scc1 L_k2_end")
        g("s_add_u32 s3, s25, %d" % (p * 1024))
        g("buffer_store_dwordx4 v[%d:%d], v2, s[8:11], s3 offen" % (o, o + 3))
    g.label("L_k2_end")
    g("s_endpgm")
    kernel_desc(g, name, 88)


def main(path):
    g = G()
    hdr = open("cdna_kernels/%s.s.ref" % NAME).read().split("\n")
    for l in hdr:
        if l.startswith(";") and "@launch" not in l and "Override" not in l and "grid=ceil" not in l:
            g.raw(l)
    g.raw("; @launch kernel=%s_gemm_kernel grid=(256,1,1) block=(512,1,1) lds=%d" % (NAME, LDS_TOTAL))
    g.raw("; @launch kernel=%s_stats_kernel grid=(4,1,1) block=(256,1,1) lds=0" % NAME)
    g.raw("; @launch kernel=%s_norm_kernel grid=(1000,1,1) block=(256,1,1) lds=0" % NAME)
    g.raw('.amdgcn_target "amdgcn-amd-amdhsa--gfx950"')
    g.raw(".text")
    gen_k1(g)
    gen_k15(g)
    gen_k2(g)
    open(path, "w").write(g.text())


if __name__ == "__main__":
    main(sys.argv[1] if len(sys.argv) > 1 else "cdna_kernels/%s.s" % NAME)
```

```python
import sys, os, struct

EXP = os.environ.get("EXP", "")

NAME = "standalone__self_sup_conv_stem_hubert__speech"


class G:
    def __init__(self):
        self.lines = []

    def __call__(self, s):
        self.lines.append("    " + s)

    def label(self, l):
        self.lines.append(l + ":")

    def raw(self, s):
        self.lines.append(s)

    def text(self):
        return "\n".join(self.lines) + "\n"


def f32bits(x):
    return struct.unpack("<I", struct.pack("<f", x))[0]


WS_PART = 0
WS_SIZE = 64 * 512 * 8
X_BYTES = 2 * 16000 * 1024
W_BYTES = 5 * 512 * 1024
OUT_BYTES = 2 * 7998 * 1024
NVALID = 7998

XE = 0
XO = 33792
W0 = 67584
WE = W0
WO = W0 + 3 * 16384
LDS_TOTAL = 149504
TAP_ORDER = [0, 2, 4, 1, 3]

V_OFFX = 8
V_OFFW = 9
FRAG = [dict(A=[16, 20], B=[24, 28]), dict(A=[32, 36], B=[40, 44])]
V_A = 48
V_B = 60
ACC = 64
TMP = 128
K1_VGPRS = 200


def acc(mb, nbl):
    return ACC + (mb * 2 + nbl) * 16


def srd(g, d, base_lo, size):
    g("s_mov_b32 s%d, s%d" % (d, base_lo))
    g("s_and_b32 s%d, s%d, 0xffff" % (d + 1, base_lo + 1))
    g("s_mov_b32 s%d, %d" % (d + 2, size))
    g("s_mov_b32 s%d, 0x00020000" % (d + 3))


def gen_k1(g):
    name = NAME + "_kernel"
    g.raw(".globl %s" % name)
    g.raw(".p2align 8")
    g.raw(".type %s,@function" % name)
    g.label(name)
    g("s_cmp_ge_u32 s2, 256")
    g("s_cbranch_scc1 L_k1_end")
    if "clk" in EXP:
        g("s_memtime s[70:71]")
        g("s_memrealtime s[72:73]")
    g("s_load_dwordx4 s[28:31], s[0:1], 0")
    g("s_load_dwordx2 s[32:33], s[0:1], 16")
    g("s_load_dwordx2 s[34:35], s[0:1], 56")
    g("s_load_dwordx4 s[48:51], s[0:1], 24")
    g("s_load_dwordx4 s[52:55], s[0:1], 40")
    g("s_and_b32 s3, s2, 7")
    g("s_lshr_b32 s27, s2, 3")
    g("s_and_b32 s19, s27, 3")
    g("s_lshr_b32 s27, s27, 2")
    g("s_lshl_b32 s20, s3, 3")
    g("s_add_u32 s20, s20, s27")
    g("s_lshr_b32 s21, s20, 5")
    g("s_and_b32 s22, s20, 31")
    g("v_lshrrev_b32 v1, 6, v0")
    g("s_nop 1")
    g("v_readfirstlane_b32 s16, v1")
    g("s_nop 3")
    g("s_lshr_b32 s17, s16, 1")
    g("s_and_b32 s18, s16, 1")
    g("s_lshl_b32 s25, s16, 10")
    g("s_mul_i32 s36, s21, 16384000")
    g("s_lshl_b32 s37, s22, 19")
    g("s_add_u32 s36, s36, s37")
    g("s_lshl_b32 s37, s16, 14")
    g("s_add_u32 s38, s36, s37")
    g("s_lshl_b32 s39, s16, 12")
    g("s_lshl_b32 s37, s19, 8")
    g("s_add_u32 s39, s39, s37")
    g("s_mov_b32 s42, 0")
    g("s_mov_b32 s43, 0")
    g("v_and_b32 v1, 63, v0")
    g("s_lshl_b32 s3, s18, 2")
    g("v_lshrrev_b32 v2, 4, v1")
    g("v_add_u32 v2, s3, v2")
    g("v_and_b32 v3, 7, v1")
    g("v_xor_b32 v3, v3, v2")
    g("v_lshlrev_b32 v3, 4, v3")
    g("v_lshrrev_b32 v4, 3, v1")
    g("v_lshlrev_b32 v4, 11, v4")
    g("v_add_u32 v%d, v3, v4" % V_OFFX)
    g("v_lshrrev_b32 v2, 4, v1")
    g("v_and_b32 v3, 15, v1")
    g("v_lshrrev_b32 v4, 2, v3")
    g("v_xor_b32 v4, v4, v2")
    g("v_lshlrev_b32 v4, 6, v4")
    g("v_lshlrev_b32 v5, 10, v2")
    g("v_add_u32 v4, v4, v5")
    g("v_and_b32 v5, 3, v1")
    g("v_lshlrev_b32 v5, 4, v5")
    g("v_add_u32 v%d, v4, v5" % V_OFFW)
    g("s_waitcnt lgkmcnt(0)")
    srd(g, 4, 28, X_BYTES)
    srd(g, 8, 30, W_BYTES)
    g("s_add_u32 s23, s38, s42")
    g("s_add_u32 s24, s39, s43")
    for u in range(3):
        dma_w(g, u, TAP_ORDER[u])
    dma_x(g, 0, "p0")
    dma_w(g, 3, TAP_ORDER[3])
    srd(g, 12, 34, WS_SIZE)
    srd(g, 64, 52, OUT_BYTES)
    g("s_lshl_b32 s3, s19, 7")
    g("s_lshl_b32 s27, s18, 6")
    g("s_add_u32 s3, s3, s27")
    g("v_and_b32 v2, 31, v1")
    g("v_add_u32 v2, s3, v2")
    g("v_lshlrev_b32 v2, 1, v2")
    g("global_load_ushort v10, v2, s[32:33]")
    g("global_load_ushort v11, v2, s[32:33] offset:64")
    g("global_load_ushort v12, v2, s[48:49]")
    g("global_load_ushort v13, v2, s[48:49] offset:64")
    g("global_load_ushort v14, v2, s[50:51]")
    g("global_load_ushort v15, v2, s[50:51] offset:64")
    g("v_and_b32 v2, 31, v1")
    g("v_lshrrev_b32 v3, 5, v1")
    g("s_lshl_b32 s3, s17, 13")
    for sh in range(3):
        g("v_add_u32 v4, %d, v2" % sh)
        g("v_lshrrev_b32 v5, 1, v4")
        g("v_and_b32 v5, 7, v5")
        g("v_lshlrev_b32 v4, 7, v4")
        g("v_add_u32 v4, s3, v4")
        for kk in range(4):
            g("v_add_u32 v6, %d, v3" % (2 * kk))
            g("v_xor_b32 v6, v6, v5")
            g("v_lshlrev_b32 v6, 4, v6")
            g("v_add_u32 v%d, v4, v6" % (V_A + sh * 4 + kk))
    g("v_and_b32 v2, 15, v1")
    g("v_lshrrev_b32 v4, 2, v2")
    g("v_lshlrev_b32 v5, 3, v3")
    g("v_add_u32 v5, v5, v4")
    g("v_lshlrev_b32 v5, 8, v5")
    g("v_lshrrev_b32 v6, 4, v1")
    g("v_and_b32 v6, 1, v6")
    g("v_lshlrev_b32 v6, 5, v6")
    g("v_add_u32 v5, v5, v6")
    g("v_and_b32 v6, 3, v2")
    g("v_lshlrev_b32 v6, 3, v6")
    g("v_add_u32 v5, v5, v6")
    g("s_lshl_b32 s3, s18, 1")
    for nbl in range(2):
        g("s_add_u32 s27, s3, %d" % nbl)
        g("v_xor_b32 v6, s27, v4")
        g("v_lshlrev_b32 v6, 6, v6")
        g("v_add_u32 v6, v6, v5")
        g("v_add_u32 v%d, %d, v6" % (V_B + 0 * 2 + nbl, WE))
        g("v_add_u32 v%d, %d, v6" % (V_B + 1 * 2 + nbl, WO))
    for r in range(16):
        g("v_mov_b32 v%d, 0" % (FRAG[1]["A"][0] + r))
    g("s_waitcnt vmcnt(4)")
    g("v_lshlrev_b32 v10, 16, v10")
    g("v_lshlrev_b32 v11, 16, v11")
    for mb in range(2):
        for nbl in range(2):
            for j in range(16):
                g("v_mov_b32 v%d, v%d" % (acc(mb, nbl) + j, 10 + nbl))
    g("s_barrier")

    g.label("L_k1_loop")
    if "noloop" in EXP:
        g("s_branch L_k1_afterloop")
    for o in range(5):
        unit(g, o)
    g("s_add_u32 s42, s42, 128")
    g("s_add_u32 s43, s43, 65536")
    g("s_cmp_lt_u32 s42, 1024")
    g("s_cbranch_scc1 L_k1_loop")
    g.label("L_k1_afterloop")
    mfmas(g, 1)
    if "clk" in EXP:
        g("s_memtime s[74:75]")
        g("s_memrealtime s[76:77]")
        g("s_waitcnt lgkmcnt(0)")
        g("s_sub_u32 s74, s74, s70")
        g("s_sub_u32 s76, s76, s72")
        g("s_or_b32 s60, s2, s16")
        g("s_cmp_lg_u32 s60, 0")
        g("s_cbranch_scc1 L_noclk")
        g("v_mov_b32 v196, s74")
        g("v_mov_b32 v197, s76")
        g("v_mov_b32 v198, 0")
        g("global_store_dwordx2 v198, v[196:197], s[54:55] offset:224")
        g.label("L_noclk")
    k1_epilogue(g)
    g.label("L_k1_end")
    g("s_endpgm")
    g.raw(".section .rodata,\"a\"")
    g.raw(".p2align 6")
    g.raw(".amdhsa_kernel %s" % name)
    g.raw("  .amdhsa_next_free_vgpr %d" % K1_VGPRS)
    g.raw("  .amdhsa_next_free_sgpr 96")
    g.raw("  .amdhsa_accum_offset %d" % ((K1_VGPRS + 3) // 4 * 4))
    g.raw("  .amdhsa_group_segment_fixed_size 0")
    g.raw("  .amdhsa_kernarg_size 64")
    g.raw("  .amdhsa_user_sgpr_count 2")
    g.raw("  .amdhsa_user_sgpr_kernarg_segment_ptr 1")
    g.raw("  .amdhsa_system_sgpr_workgroup_id_x 1")
    g.raw(".end_amdhsa_kernel")


_tagc = [0]


def dma_x(g, par, tag):
    XB = XE if par == 0 else XO
    for i in range(4):
        g("s_add_u32 m0, s25, %d" % (XB + 8192 * i))
        g("s_add_u32 s26, s23, %d" % (131072 * i))
        g("buffer_load_dwordx4 v%d, s[4:7], s26 offen lds" % V_OFFX)
    g("s_cmp_lg_u32 s16, 0")
    g("s_cbranch_scc1 L_noextra_%s" % tag)
    g("s_mov_b32 m0, %d" % (XB + 32768))
    g("s_add_u32 s26, s23, %d" % 524288)
    g("buffer_load_dwordx4 v%d, s[4:7], s26 offen lds" % V_OFFX)
    g.label("L_noextra_%s" % tag)


def dma_w(g, slot, tap):
    for i2 in range(2):
        g("s_add_u32 m0, s25, %d" % (W0 + 16384 * slot + 8192 * i2))
        g("s_add_u32 s26, s24, %d" % (524288 * tap + 32768 * i2))
        g("buffer_load_dwordx4 v%d, s[8:11], s26 offen lds" % V_OFFW)


def read_list(o, kk, st):
    out = []
    if "noread" in EXP:
        return out
    tap = TAP_ORDER[o]
    par, sh = tap & 1, tap >> 1
    XB = XE if par == 0 else XO
    for mb in range(2):
        a = FRAG[st]["A"][mb]
        out.append("ds_read_b128 v[%d:%d], v%d offset:%d" % (a, a + 3, V_A + sh * 4 + kk, XB + mb * 4096))
    vb = 0 if o < 3 else 1
    so = o if o < 3 else o - 3
    for nbl in range(2):
        b = FRAG[st]["B"][nbl]
        for h in range(2):
            out.append("ds_read_b64_tr_b16 v[%d:%d], v%d offset:%d" % (b + 2 * h, b + 2 * h + 1, V_B + vb * 2 + nbl,
                                                                       so * 16384 + kk * 4096 + h * 1024))
    return out


def reads(g, o, kk, st):
    for l in read_list(o, kk, st):
        g(l)


def mfma_list(st):
    out = []
    if "nomfma" in EXP:
        return out
    for nbl in range(2):
        for mb in range(2):
            a = FRAG[st]["A"][mb]
            b = FRAG[st]["B"][nbl]
            c = acc(mb, nbl)
            out.append("v_mfma_f32_32x32x16_bf16 v[%d:%d], v[%d:%d], v[%d:%d], v[%d:%d]" % (c, c + 15, a, a + 3, b, b + 3, c, c + 15))
    return out


def mfmas(g, st):
    for l in mfma_list(st):
        g(l)


VM_WAIT = {0: 2, 1: 14, 2: 14, 3: 4, 4: 14}


def unit(g, o):
    _tagc[0] += 1
    tag = "t%d" % _tagc[0]
    reads(g, o, 0, 0)
    mfmas(g, 1)
    if "nodma" not in EXP:
        o4 = (o + 4) % 5
        if o >= 1:
            g("s_cmp_eq_u32 s42, 896")
            g("s_cbranch_scc1 L_nodma_%s" % tag)
            g("s_add_u32 s24, s39, s43")
            g("s_add_u32 s24, s24, 65536")
        else:
            g("s_add_u32 s24, s39, s43")
        dma_w(g, o4, TAP_ORDER[o4])
        if o == 3:
            g("s_add_u32 s23, s38, s42")
            g("s_add_u32 s23, s23, 128")
            dma_x(g, 0, tag)
        if o >= 1:
            g.label("L_nodma_%s" % tag)
        if o == 0:
            g("s_add_u32 s23, s38, s42")
            g("s_add_u32 s23, s23, 1024")
            dma_x(g, 1, tag)
    for s_ in range(4):
        if s_ + 1 < 4:
            reads(g, o, s_ + 1, (s_ + 1) % 2)
            g("s_waitcnt lgkmcnt(6)")
            mfmas(g, s_ % 2)
        else:
            g("s_cmp_lg_u32 s42, 896")
            g("s_cbranch_scc1 L_w_%s" % tag)
            g("s_waitcnt vmcnt(0)")
            g.label("L_w_%s" % tag)
            g("s_waitcnt vmcnt(%d) lgkmcnt(0)" % VM_WAIT[(o + 1) % 5])
            g("s_barrier")


RED1 = 0
RED2 = 8192
RED3 = 8192 + 32768


def k1_epilogue(g):
    T = TMP
    g("s_nop 15")
    g("s_nop 7")
    g("v_and_b32 v1, 63, v0")
    g("v_lshrrev_b32 v3, 5, v1")
    g("s_lshl_b32 s3, s17, 6")
    g("v_lshlrev_b32 v4, 2, v3")
    g("v_add_u32 v4, s3, v4")
    g("s_lshl_b32 s27, s22, 8")
    g("s_sub_u32 s46, %d, s27" % NVALID)
    g("s_cmp_lg_u32 s22, 31")
    g("s_cbranch_scc1 L_k1_noedge")
    for mb in range(2):
        for j in range(16):
            c = mb * 32 + 8 * (j // 4) + (j % 4)
            g("v_add_u32 v5, %d, v4" % c)
            g("v_cmp_gt_u32 vcc, s46, v5")
            g("s_nop 1")
            for nbl in range(2):
                r = acc(mb, nbl) + j
                g("v_cndmask_b32 v%d, 0, v%d, vcc" % (r, r))
    g.label("L_k1_noedge")
    for nbl in range(2):
        s0, q0 = T + nbl * 8, T + nbl * 8 + 1
        s1, q1 = T + nbl * 8 + 2, T + nbl * 8 + 3
        regs = [acc(mb, nbl) + j for mb in range(2) for j in range(16)]
        g("v_mov_b32 v%d, v%d" % (s0, regs[0]))
        g("v_mul_f32 v%d, v%d, v%d" % (q0, regs[0], regs[0]))
        g("v_mov_b32 v%d, v%d" % (s1, regs[1]))
        g("v_mul_f32 v%d, v%d, v%d" % (q1, regs[1], regs[1]))
        for i, r in enumerate(regs[2:]):
            if i % 2 == 0:
                g("v_add_f32 v%d, v%d, v%d" % (s0, s0, r))
                g("v_fmac_f32 v%d, v%d, v%d" % (q0, r, r))
            else:
                g("v_add_f32 v%d, v%d, v%d" % (s1, s1, r))
                g("v_fmac_f32 v%d, v%d, v%d" % (q1, r, r))
        g("v_add_f32 v%d, v%d, v%d" % (s0, s0, s1))
        g("v_add_f32 v%d, v%d, v%d" % (q0, q0, q1))
    g("s_lshl_b32 s3, s17, 7")
    g("s_lshl_b32 s27, s18, 6")
    g("s_add_u32 s3, s3, s27")
    g("v_and_b32 v2, 31, v1")
    g("v_add_u32 v2, s3, v2")
    g("v_lshlrev_b32 v2, 1, v2")
    g("v_add_u32 v2, v2, v3")
    g("v_lshlrev_b32 v2, 3, v2")
    g("ds_write_b64 v2, v[%d:%d] offset:%d" % (T, T + 1, RED1))
    g("ds_write_b64 v2, v[%d:%d] offset:%d" % (T + 8, T + 9, RED1 + 512))
    g("s_waitcnt lgkmcnt(0)")
    g("s_barrier")
    g("s_cmp_ge_u32 s16, 2")
    g("s_cbranch_scc1 L_k1_pub_done")
    g("v_lshlrev_b32 v2, 4, v0")
    for wr in range(4):
        g("ds_read_b128 v[%d:%d], v2 offset:%d" % (T + 32 + wr * 4, T + 35 + wr * 4, RED1 + wr * 2048))
    g("s_waitcnt lgkmcnt(0)")
    for wr in range(4):
        b = T + 32 + wr * 4
        if wr == 0:
            g("v_add_f32 v%d, v%d, v%d" % (T, b, b + 2))
            g("v_add_f32 v%d, v%d, v%d" % (T + 1, b + 1, b + 3))
        else:
            g("v_add_f32 v%d, v%d, v%d" % (b, b, b + 2))
            g("v_add_f32 v%d, v%d, v%d" % (b + 1, b + 1, b + 3))
            g("v_add_f32 v%d, v%d, v%d" % (T, T, b))
            g("v_add_f32 v%d, v%d, v%d" % (T + 1, T + 1, b + 1))
    g("s_lshl_b32 s3, s20, 9")
    g("s_lshl_b32 s27, s19, 7")
    g("s_add_u32 s3, s3, s27")
    g("s_lshl_b32 s3, s3, 3")
    g("s_add_u32 s3, s3, %d" % WS_PART)
    g("v_lshlrev_b32 v2, 3, v0")
    g("buffer_store_dwordx2 v[%d:%d], v2, s[12:15], s3 offen sc1" % (T, T + 1))
    g("s_waitcnt vmcnt(0)")
    g.label("L_k1_pub_done")
    g("s_barrier")
    g("s_lshl_b32 s47, s21, 2")
    g("s_add_u32 s47, s47, s19")
    g("s_lshl_b32 s47, s47, 5")
    g("s_cmp_lg_u32 s16, 0")
    g("s_cbranch_scc1 L_k1_waited")
    g("v_mov_b32 v2, s47")
    g("v_mov_b32 v5, 1")
    g("s_mov_b64 s[56:57], exec")
    g("s_mov_b64 exec, 1")
    g("global_atomic_add v2, v5, s[54:55] sc1")
    g("s_mov_b32 s58, 0")
    g.label("L_k1_poll")
    g("global_load_dword v6, v2, s[54:55] sc1")
    g("s_waitcnt vmcnt(0)")
    g("v_readfirstlane_b32 s3, v6")
    g("s_cmp_ge_u32 s3, 32")
    g("s_cbranch_scc1 L_k1_polled")
    g("s_sleep 1")
    g("s_add_u32 s58, s58, 1")
    g("s_cmp_lt_u32 s58, 200000")
    g("s_cbranch_scc1 L_k1_poll")
    g.label("L_k1_polled")
    g("s_mov_b64 exec, s[56:57]")
    g.label("L_k1_waited")
    g("s_barrier")
    g("v_lshrrev_b32 v2, 4, v0")
    g("v_and_b32 v5, 15, v0")
    g("v_lshlrev_b32 v6, 12, v2")
    g("v_lshl_add_u32 v6, v5, 6, v6")
    g("s_lshl_b32 s3, s21, 17")
    g("s_lshl_b32 s27, s19, 10")
    g("s_add_u32 s3, s3, s27")
    g("s_add_u32 s3, s3, %d" % WS_PART)
    for i in range(4):
        g("buffer_load_dwordx4 v[%d:%d], v6, s[12:15], s3 offen offset:%d sc1" % (T + 4 * i, T + 4 * i + 3, 16 * i))
    g("v_lshlrev_b32 v7, 10, v2")
    g("v_lshl_add_u32 v7, v5, 6, v7")
    g("s_waitcnt vmcnt(0)")
    for i in range(4):
        g("ds_write_b128 v7, v[%d:%d] offset:%d" % (T + 4 * i, T + 4 * i + 3, RED2 + 16 * i))
    g("s_waitcnt lgkmcnt(0)")
    g("s_barrier")
    g("v_and_b32 v5, 127, v0")
    g("v_lshrrev_b32 v2, 7, v0")
    g("v_lshlrev_b32 v7, 13, v2")
    g("v_lshl_add_u32 v7, v5, 3, v7")
    for i in range(8):
        g("ds_read_b64 v[%d:%d], v7 offset:%d" % (T + 2 * i, T + 2 * i + 1, RED2 + 1024 * i))
    g("s_waitcnt lgkmcnt(0)")
    for i in range(1, 8):
        g("v_add_f32 v%d, v%d, v%d" % (T, T, T + 2 * i))
        g("v_add_f32 v%d, v%d, v%d" % (T + 1, T + 1, T + 2 * i + 1))
    g("v_lshlrev_b32 v7, 10, v2")
    g("v_lshl_add_u32 v7, v5, 3, v7")
    g("ds_write_b64 v7, v[%d:%d] offset:%d" % (T, T + 1, RED3))
    g("s_waitcnt lgkmcnt(0)")
    g("s_barrier")
    g("s_lshl_b32 s3, s18, 6")
    g("v_and_b32 v2, 31, v1")
    g("v_add_u32 v2, s3, v2")
    g("v_lshlrev_b32 v2, 3, v2")
    for nbl in range(2):
        for qd in range(4):
            r = T + nbl * 8 + qd * 2
            g("ds_read_b64 v[%d:%d], v2 offset:%d" % (r, r + 1, RED3 + qd * 1024 + nbl * 256))
    g("s_waitcnt lgkmcnt(0)")
    g("s_mov_b32 s3, 0x%08x" % f32bits(1.0 / NVALID))
    g("s_mov_b32 s27, 0x%08x" % f32bits(1e-5))
    SC = [T + 16, T + 18]
    for nbl in range(2):
        r = T + nbl * 8
        for qd in range(1, 4):
            g("v_add_f32 v%d, v%d, v%d" % (r, r, r + 2 * qd))
            g("v_add_f32 v%d, v%d, v%d" % (r + 1, r + 1, r + 2 * qd + 1))
        g("v_mul_f32 v%d, s3, v%d" % (r, r))
        g("v_mul_f32 v%d, s3, v%d" % (r + 1, r + 1))
        g("v_fma_f32 v%d, -v%d, v%d, v%d" % (r + 1, r, r, r + 1))
        g("v_max_f32 v%d, 0, v%d" % (r + 1, r + 1))
        g("v_add_f32 v%d, s27, v%d" % (r + 1, r + 1))
        g("v_rsq_f32 v%d, v%d" % (r + 1, r + 1))
        g("v_lshlrev_b32 v%d, 16, v%d" % (12 + nbl, 12 + nbl))
        g("v_lshlrev_b32 v%d, 16, v%d" % (14 + nbl, 14 + nbl))
        g("v_mul_f32 v%d, v%d, v%d" % (SC[nbl], 12 + nbl, r + 1))
        g("v_fma_f32 v%d, -v%d, v%d, v%d" % (SC[nbl] + 1, r, SC[nbl], 14 + nbl))
    g("s_mul_i32 s3, s21, %d" % NVALID)
    g("s_lshl_b32 s27, s22, 8")
    g("s_add_u32 s3, s3, s27")
    g("s_lshl_b32 s27, s17, 6")
    g("s_add_u32 s3, s3, s27")
    g("s_lshl_b32 s44, s3, 10")
    g("v_lshlrev_b32 v4, 2, v3")
    g("v_and_b32 v5, 1, v1")
    g("v_add_u32 v4, v4, v5")
    g("v_lshlrev_b32 v8, 10, v4")
    g("s_lshl_b32 s3, s19, 7")
    g("s_lshl_b32 s27, s18, 6")
    g("s_add_u32 s3, s3, s27")
    g("v_and_b32 v6, 30, v1")
    g("v_add_u32 v6, s3, v6")
    g("v_lshlrev_b32 v6, 1, v6")
    g("v_add_u32 v8, v8, v6")
    g("s_lshl_b32 s3, s17, 6")
    g("v_add_u32 v4, s3, v4")
    g("v_mov_b32 v7, 0x05040100")
    g("v_mov_b32 v9, 0x03020706")
    g("v_cmp_eq_u32 vcc, 1, v5")
    g("s_nop 1")
    g("v_cndmask_b32 v7, v7, v9, vcc")
    g("s_mov_b32 s60, 0x%08x" % f32bits(-2.0 * 1.4426950408889634 * 0.7978845608028654 * 0.044715))
    g("v_mov_b32 v9, 0x%08x" % f32bits(-2.0 * 1.4426950408889634 * 0.7978845608028654))
    W = T + 24
    for mb in range(2):
        for nbl in range(2):
            a0 = acc(mb, nbl)
            for j in range(16):
                g("v_fma_f32 v%d, v%d, v%d, v%d" % (a0 + j, a0 + j, SC[nbl], SC[nbl] + 1))
            for j in range(16):
                g("v_mul_f32 v%d, v%d, v%d" % (W + j, a0 + j, a0 + j))
            for j in range(16):
                g("v_fma_f32 v%d, v%d, s60, v9" % (W + j, W + j))
            for j in range(16):
                g("v_mul_f32 v%d, v%d, v%d" % (W + j, W + j, a0 + j))
            for j in range(16):
                g("v_exp_f32 v%d, v%d" % (W + j, W + j))
            for j in range(16):
                g("v_add_f32 v%d, 1.0, v%d" % (W + j, W + j))
            for j in range(16):
                g("v_rcp_f32 v%d, v%d" % (W + j, W + j))
            for j in range(16):
                g("v_mul_f32 v%d, v%d, v%d" % (a0 + j, a0 + j, W + j))
            for jj in range(4):
                g("s_add_u32 s45, s44, %d" % (mb * 32768 + jj * 8192))
                for j2 in (0, 2):
                    r = a0 + jj * 4 + j2
                    p = W + 16 + ((jj * 2 + j2 // 2) % 8) * 2
                    n = p + 1
                    g("v_cvt_pk_bf16_f32 v%d, v%d, v%d" % (p, r, r + 1))
                    g("s_nop 1")
                    g("v_mov_b32_dpp v%d, v%d quad_perm:[1,0,3,2] row_mask:0xf bank_mask:0xf" % (n, p))
                    g("v_perm_b32 v%d, v%d, v%d, v7" % (p, n, p))
                    c = mb * 32 + jj * 8 + j2
                    g("v_add_u32 v2, %d, v4" % c)
                    g("v_cmp_gt_u32 vcc, s46, v2")
                    g("s_and_saveexec_b64 s[56:57], vcc")
                    g("buffer_store_dword v%d, v8, s[64:67], s45 offen offset:%d" % (p, j2 * 1024 + nbl * 64))
                    g("s_mov_b64 exec, s[56:57]")


def main(path):
    g = G()
    hdr = open("cdna_kernels/%s.s.ref" % NAME).read().split("\n")
    for l in hdr:
        if l.startswith(";") and "@launch" not in l and "Override" not in l and "grid=ceil" not in l:
            g.raw(l)
    g.raw("; @launch grid=(256,1,1) block=(512,1,1) lds=%d" % LDS_TOTAL)
    g.raw('.amdgcn_target "amdgcn-amd-amdhsa--gfx950"')
    g.raw(".text")
    gen_k1(g)
    open(path, "w").write(g.text())


if __name__ == "__main__":
    main(sys.argv[1] if len(sys.argv) > 1 else "cdna_kernels/%s.s" % NAME)
```

```python
import sys, os, struct

EXP = os.environ.get("EXP", "")

NAME = "standalone__self_sup_conv_stem_hubert__speech"


class G:
    def __init__(self):
        self.lines = []

    def __call__(self, s):
        self.lines.append("    " + s)

    def label(self, l):
        self.lines.append(l + ":")

    def raw(self, s):
        self.lines.append(s)

    def text(self):
        return "\n".join(self.lines) + "\n"


def f32bits(x):
    return struct.unpack("<I", struct.pack("<f", x))[0]


WS_PART = 0
WS_SIZE = 64 * 512 * 8
X_BYTES = 2 * 16000 * 1024
W_BYTES = 5 * 512 * 1024
OUT_BYTES = 2 * 7998 * 1024
NVALID = 7998

XE = 0
XO = 33792
W0 = 67584
WE = W0
WO = W0 + 3 * 16384
LDS_TOTAL = 149504
TAP_ORDER = [0, 2, 4, 1, 3]

V_OFFX = 8
V_OFFW = 9
NMB = 4
FRAG = [dict(A=[16, 20, 24, 28], B=[32, 36]), dict(A=[40, 44, 48, 52], B=[56, 60])]
V_A = 64
V_B = 76
ACC = 80
TMP = 208
K1_VGPRS = 256


def acc(mb, nbl):
    return ACC + (mb * 2 + nbl) * 16


def stamp(g, i):
    if "stamp" in EXP:
        g("s_memrealtime s[%d:%d]" % (76 + 2 * i, 77 + 2 * i))


def stamp_dump(g, n):
    if "stamp" in EXP:
        g("s_waitcnt lgkmcnt(0)")
        g("s_or_b32 s60, s2, s16")
        g("s_cmp_lg_u32 s60, 0")
        g("s_cbranch_scc1 L_nostamp")
        g("v_mov_b32 v232, 0")
        for i in range(n):
            g("s_sub_u32 s61, s%d, s76" % (76 + 2 * i))
            g("v_mov_b32 v230, s61")
            g("global_store_dword v232, v230, s[54:55] offset:%d" % (128 + 4 * i))
        g.label("L_nostamp")


def srd(g, d, base_lo, size):
    g("s_mov_b32 s%d, s%d" % (d, base_lo))
    g("s_and_b32 s%d, s%d, 0xffff" % (d + 1, base_lo + 1))
    g("s_mov_b32 s%d, %d" % (d + 2, size))
    g("s_mov_b32 s%d, 0x00020000" % (d + 3))


def gen_k1(g):
    name = NAME + "_kernel"
    g.raw(".globl %s" % name)
    g.raw(".p2align 8")
    g.raw(".type %s,@function" % name)
    g.label(name)
    g("s_cmp_ge_u32 s2, 256")
    g("s_cbranch_scc1 L_k1_end")
    stamp(g, 0)
    if "clk" in EXP:
        g("s_memtime s[70:71]")
        g("s_memrealtime s[72:73]")
    g("s_load_dwordx4 s[28:31], s[0:1], 0")
    g("s_load_dwordx2 s[32:33], s[0:1], 16")
    g("s_load_dwordx2 s[34:35], s[0:1], 56")
    g("s_load_dwordx4 s[48:51], s[0:1], 24")
    g("s_load_dwordx4 s[52:55], s[0:1], 40")
    g("s_and_b32 s3, s2, 7")
    g("s_lshr_b32 s27, s2, 3")
    g("s_and_b32 s19, s27, 3")
    g("s_lshr_b32 s27, s27, 2")
    g("s_lshl_b32 s20, s3, 3")
    g("s_add_u32 s20, s20, s27")
    g("s_lshr_b32 s21, s20, 5")
    g("s_and_b32 s22, s20, 31")
    g("v_lshrrev_b32 v1, 6, v0")
    g("s_nop 1")
    g("v_readfirstlane_b32 s16, v1")
    g("s_nop 3")
    g("s_lshr_b32 s17, s16, 1")
    g("s_and_b32 s17, s17, 1")
    g("s_and_b32 s18, s16, 1")
    g("s_and_b32 s59, s16, 3")
    g("s_lshl_b32 s25, s59, 10")
    g("s_mul_i32 s36, s21, 16384000")
    g("s_lshl_b32 s37, s22, 19")
    g("s_add_u32 s36, s36, s37")
    g("s_lshl_b32 s37, s59, 14")
    g("s_add_u32 s38, s36, s37")
    g("s_lshl_b32 s39, s59, 12")
    g("s_lshl_b32 s37, s19, 8")
    g("s_add_u32 s39, s39, s37")
    g("s_mov_b32 s42, 0")
    g("s_mov_b32 s43, 0")
    g("v_and_b32 v1, 63, v0")
    g("s_lshl_b32 s3, s18, 2")
    g("v_lshrrev_b32 v2, 4, v1")
    g("v_add_u32 v2, s3, v2")
    g("v_and_b32 v3, 7, v1")
    g("v_xor_b32 v3, v3, v2")
    g("v_lshlrev_b32 v3, 4, v3")
    g("v_lshrrev_b32 v4, 3, v1")
    g("v_lshlrev_b32 v4, 11, v4")
    g("v_add_u32 v%d, v3, v4" % V_OFFX)
    g("v_lshrrev_b32 v2, 4, v1")
    g("v_and_b32 v3, 15, v1")
    g("v_lshrrev_b32 v4, 2, v3")
    g("v_xor_b32 v4, v4, v2")
    g("v_lshlrev_b32 v4, 6, v4")
    g("v_lshlrev_b32 v5, 10, v2")
    g("v_add_u32 v4, v4, v5")
    g("v_and_b32 v5, 3, v1")
    g("v_lshlrev_b32 v5, 4, v5")
    g("v_add_u32 v%d, v4, v5" % V_OFFW)
    g("s_waitcnt lgkmcnt(0)")
    srd(g, 4, 28, X_BYTES)
    srd(g, 8, 30, W_BYTES)
    g("s_cmp_lt_u32 s16, 4")
    g("s_cbranch_scc1 L_pro_compute")
    g("s_add_u32 s23, s38, s42")
    g("s_add_u32 s24, s39, s43")
    for u in range(3):
        dma_w(g, u, TAP_ORDER[u])
    dma_x(g, 0, "p0")
    dma_w(g, 3, TAP_ORDER[3])
    srd(g, 12, 34, WS_SIZE)
    srd(g, 64, 52, OUT_BYTES)
    g("s_waitcnt vmcnt(4)")
    g("s_barrier")
    g.label("L_ld_loop")
    for o in range(5):
        ld_unit(g, o)
    g("s_add_u32 s42, s42, 128")
    g("s_add_u32 s43, s43, 65536")
    g("s_cmp_lt_u32 s42, 1024")
    g("s_cbranch_scc1 L_ld_loop")
    g("s_branch L_k1_epi")
    g.label("L_pro_compute")
    srd(g, 12, 34, WS_SIZE)
    srd(g, 64, 52, OUT_BYTES)
    g("s_lshl_b32 s3, s19, 7")
    g("s_lshl_b32 s27, s18, 6")
    g("s_add_u32 s3, s3, s27")
    g("v_and_b32 v2, 31, v1")
    g("v_add_u32 v2, s3, v2")
    g("v_lshlrev_b32 v2, 1, v2")
    g("global_load_ushort v10, v2, s[32:33]")
    g("global_load_ushort v11, v2, s[32:33] offset:64")
    g("global_load_ushort v12, v2, s[48:49]")
    g("global_load_ushort v13, v2, s[48:49] offset:64")
    g("global_load_ushort v14, v2, s[50:51]")
    g("global_load_ushort v15, v2, s[50:51] offset:64")
    g("v_and_b32 v2, 31, v1")
    g("v_lshrrev_b32 v3, 5, v1")
    g("s_lshl_b32 s3, s17, 14")
    for sh in range(3):
        g("v_add_u32 v4, %d, v2" % sh)
        g("v_lshrrev_b32 v5, 1, v4")
        g("v_and_b32 v5, 7, v5")
        g("v_lshlrev_b32 v4, 7, v4")
        g("v_add_u32 v4, s3, v4")
        for kk in range(4):
            g("v_add_u32 v6, %d, v3" % (2 * kk))
            g("v_xor_b32 v6, v6, v5")
            g("v_lshlrev_b32 v6, 4, v6")
            g("v_add_u32 v%d, v4, v6" % (V_A + sh * 4 + kk))
    g("v_and_b32 v2, 15, v1")
    g("v_lshrrev_b32 v4, 2, v2")
    g("v_lshlrev_b32 v5, 3, v3")
    g("v_add_u32 v5, v5, v4")
    g("v_lshlrev_b32 v5, 8, v5")
    g("v_lshrrev_b32 v6, 4, v1")
    g("v_and_b32 v6, 1, v6")
    g("v_lshlrev_b32 v6, 5, v6")
    g("v_add_u32 v5, v5, v6")
    g("v_and_b32 v6, 3, v2")
    g("v_lshlrev_b32 v6, 3, v6")
    g("v_add_u32 v5, v5, v6")
    g("s_lshl_b32 s3, s18, 1")
    for nbl in range(2):
        g("s_add_u32 s27, s3, %d" % nbl)
        g("v_xor_b32 v6, s27, v4")
        g("v_lshlrev_b32 v6, 6, v6")
        g("v_add_u32 v6, v6, v5")
        g("v_add_u32 v%d, %d, v6" % (V_B + 0 * 2 + nbl, WE))
        g("v_add_u32 v%d, %d, v6" % (V_B + 1 * 2 + nbl, WO))
    for r in range(24):
        g("v_mov_b32 v%d, 0" % (FRAG[1]["A"][0] + r))
    g("s_waitcnt vmcnt(4)")
    g("v_lshlrev_b32 v10, 16, v10")
    g("v_lshlrev_b32 v11, 16, v11")
    for mb in range(NMB):
        for nbl in range(2):
            for j in range(16):
                g("v_mov_b32 v%d, v%d" % (acc(mb, nbl) + j, 10 + nbl))
    g("s_barrier")
    stamp(g, 1)

    g.label("L_k1_loop")
    if "noloop" in EXP:
        g("s_branch L_k1_afterloop")
    for o in range(5):
        unit(g, o)
    g("s_add_u32 s42, s42, 128")
    g("s_add_u32 s43, s43, 65536")
    g("s_cmp_lt_u32 s42, 1024")
    g("s_cbranch_scc1 L_k1_loop")
    g.label("L_k1_afterloop")
    mfmas(g, 1)
    if "clk" in EXP:
        g("s_memtime s[74:75]")
        g("s_memrealtime s[76:77]")
        g("s_waitcnt lgkmcnt(0)")
        g("s_sub_u32 s74, s74, s70")
        g("s_sub_u32 s76, s76, s72")
        g("s_or_b32 s60, s2, s16")
        g("s_cmp_lg_u32 s60, 0")
        g("s_cbranch_scc1 L_noclk")
        g("v_mov_b32 v230, s74")
        g("v_mov_b32 v231, s76")
        g("v_mov_b32 v232, 0")
        g("global_store_dwordx2 v232, v[230:231], s[54:55] offset:224")
        g.label("L_noclk")
    g.label("L_k1_epi")
    k1_epilogue(g)
    g.label("L_k1_end")
    g("s_endpgm")
    g.raw(".section .rodata,\"a\"")
    g.raw(".p2align 6")
    g.raw(".amdhsa_kernel %s" % name)
    g.raw("  .amdhsa_next_free_vgpr %d" % K1_VGPRS)
    g.raw("  .amdhsa_next_free_sgpr 100")
    g.raw("  .amdhsa_accum_offset %d" % ((K1_VGPRS + 3) // 4 * 4))
    g.raw("  .amdhsa_group_segment_fixed_size 0")
    g.raw("  .amdhsa_kernarg_size 64")
    g.raw("  .amdhsa_user_sgpr_count 2")
    g.raw("  .amdhsa_user_sgpr_kernarg_segment_ptr 1")
    g.raw("  .amdhsa_system_sgpr_workgroup_id_x 1")
    g.raw(".end_amdhsa_kernel")


_tagc = [0]


def dma_x(g, par, tag):
    XB = XE if par == 0 else XO
    for i in range(8):
        g("s_add_u32 m0, s25, %d" % (XB + 4096 * i))
        g("s_add_u32 s26, s23, %d" % (65536 * i))
        g("buffer_load_dwordx4 v%d, s[4:7], s26 offen lds" % V_OFFX)
    g("s_cmp_lg_u32 s59, 0")
    g("s_cbranch_scc1 L_noextra_%s" % tag)
    g("s_mov_b32 m0, %d" % (XB + 32768))
    g("s_add_u32 s26, s23, %d" % 524288)
    g("buffer_load_dwordx4 v%d, s[4:7], s26 offen lds" % V_OFFX)
    g.label("L_noextra_%s" % tag)


def dma_w(g, slot, tap):
    for i2 in range(4):
        g("s_add_u32 m0, s25, %d" % (W0 + 16384 * slot + 4096 * i2))
        g("s_add_u32 s26, s24, %d" % (524288 * tap + 16384 * i2))
        g("buffer_load_dwordx4 v%d, s[8:11], s26 offen lds" % V_OFFW)


def read_list(o, kk, st):
    out = []
    if "noread" in EXP:
        return out
    tap = TAP_ORDER[o]
    par, sh = tap & 1, tap >> 1
    XB = XE if par == 0 else XO
    for mb in range(NMB):
        a = FRAG[st]["A"][mb]
        out.append("ds_read_b128 v[%d:%d], v%d offset:%d" % (a, a + 3, V_A + sh * 4 + kk, XB + mb * 4096))
    vb = 0 if o < 3 else 1
    so = o if o < 3 else o - 3
    for nbl in range(2):
        b = FRAG[st]["B"][nbl]
        for h in range(2):
            out.append("ds_read_b64_tr_b16 v[%d:%d], v%d offset:%d" % (b + 2 * h, b + 2 * h + 1, V_B + vb * 2 + nbl,
                                                                       so * 16384 + kk * 4096 + h * 1024))
    out = [out[0], out[4], out[5], out[1], out[2], out[3], out[6], out[7]]
    return out


def reads(g, o, kk, st):
    for l in read_list(o, kk, st):
        g(l)


def mfma_list(st):
    out = []
    if "nomfma" in EXP:
        return out
    for nbl in range(2):
        for mb in range(NMB):
            a = FRAG[st]["A"][mb]
            b = FRAG[st]["B"][nbl]
            c = acc(mb, nbl)
            out.append("v_mfma_f32_32x32x16_bf16 v[%d:%d], v[%d:%d], v[%d:%d], v[%d:%d]" % (c, c + 15, a, a + 3, b, b + 3, c, c + 15))
    return out


def mfmas(g, st):
    for l in mfma_list(st):
        g(l)


VM_WAIT = {0: 4, 1: 28, 2: 28, 3: 8, 4: 28}


def ld_unit(g, o):
    _tagc[0] += 1
    tag = "t%d" % _tagc[0]
    o4 = (o + 4) % 5
    if "nodma" not in EXP:
        if o >= 1:
            g("s_cmp_eq_u32 s42, 896")
            g("s_cbranch_scc1 L_nodma_%s" % tag)
            g("s_add_u32 s24, s39, s43")
            g("s_add_u32 s24, s24, 65536")
        else:
            g("s_add_u32 s24, s39, s43")
        dma_w(g, o4, TAP_ORDER[o4])
        if o == 3:
            g("s_add_u32 s23, s38, s42")
            g("s_add_u32 s23, s23, 128")
            dma_x(g, 0, tag)
        if o >= 1:
            g.label("L_nodma_%s" % tag)
        if o == 0:
            g("s_add_u32 s23, s38, s42")
            g("s_add_u32 s23, s23, 1024")
            dma_x(g, 1, tag)
    g("s_cmp_lg_u32 s42, 896")
    g("s_cbranch_scc1 L_w_%s" % tag)
    g("s_waitcnt vmcnt(0)")
    g.label("L_w_%s" % tag)
    g("s_waitcnt vmcnt(%d)" % VM_WAIT[(o + 1) % 5])
    g("s_barrier")


def group(g, mset, rl, first):
    ml = mfma_list(mset)
    waits = {0: 5, 1: 5, 2: 5, 3: 5, 4: 4}
    for i, m in enumerate(ml):
        if not first and i in waits and rl is not None:
            g("s_waitcnt lgkmcnt(%d)" % waits[i])
        g(m)
        if rl is not None and i < len(rl):
            g(rl[i])


def unit(g, o):
    group(g, 1, read_list(o, 0, 0), True)
    for s_ in range(3):
        group(g, s_ % 2, read_list(o, s_ + 1, (s_ + 1) % 2), False)
    g("s_waitcnt lgkmcnt(0)")
    g("s_barrier")


RED1 = 0
RED2 = 8192
RED3 = 8192 + 32768


def k1_epilogue(g):
    T = TMP
    stamp(g, 2)
    g("s_nop 15")
    g("s_nop 7")
    g("v_and_b32 v1, 63, v0")
    g("v_lshrrev_b32 v3, 5, v1")
    g("s_cmp_ge_u32 s16, 4")
    g("s_cbranch_scc1 L_k1_sums_done")
    g("s_lshl_b32 s3, s17, 7")
    g("v_lshlrev_b32 v4, 2, v3")
    g("v_add_u32 v4, s3, v4")
    g("s_lshl_b32 s27, s22, 8")
    g("s_sub_u32 s46, %d, s27" % NVALID)
    g("s_cmp_lg_u32 s22, 31")
    g("s_cbranch_scc1 L_k1_noedge")
    for mb in range(NMB):
        for j in range(16):
            c = mb * 32 + 8 * (j // 4) + (j % 4)
            g("v_add_u32 v5, %d, v4" % c)
            g("v_cmp_gt_u32 vcc, s46, v5")
            g("s_nop 1")
            for nbl in range(2):
                r = acc(mb, nbl) + j
                g("v_cndmask_b32 v%d, 0, v%d, vcc" % (r, r))
    g.label("L_k1_noedge")
    for nbl in range(2):
        s0, q0 = T + nbl * 8, T + nbl * 8 + 1
        s1, q1 = T + nbl * 8 + 2, T + nbl * 8 + 3
        regs = [acc(mb, nbl) + j for mb in range(NMB) for j in range(16)]
        g("v_mov_b32 v%d, v%d" % (s0, regs[0]))
        g("v_mul_f32 v%d, v%d, v%d" % (q0, regs[0], regs[0]))
        g("v_mov_b32 v%d, v%d" % (s1, regs[1]))
        g("v_mul_f32 v%d, v%d, v%d" % (q1, regs[1], regs[1]))
        for i, r in enumerate(regs[2:]):
            if i % 2 == 0:
                g("v_add_f32 v%d, v%d, v%d" % (s0, s0, r))
                g("v_fmac_f32 v%d, v%d, v%d" % (q0, r, r))
            else:
                g("v_add_f32 v%d, v%d, v%d" % (s1, s1, r))
                g("v_fmac_f32 v%d, v%d, v%d" % (q1, r, r))
        g("v_add_f32 v%d, v%d, v%d" % (s0, s0, s1))
        g("v_add_f32 v%d, v%d, v%d" % (q0, q0, q1))
    g("s_lshl_b32 s3, s17, 7")
    g("s_lshl_b32 s27, s18, 6")
    g("s_add_u32 s3, s3, s27")
    g("v_and_b32 v2, 31, v1")
    g("v_add_u32 v2, s3, v2")
    g("v_lshlrev_b32 v2, 1, v2")
    g("v_add_u32 v2, v2, v3")
    g("v_lshlrev_b32 v2, 3, v2")
    g("ds_write_b64 v2, v[%d:%d] offset:%d" % (T, T + 1, RED1))
    g("ds_write_b64 v2, v[%d:%d] offset:%d" % (T + 8, T + 9, RED1 + 512))
    g("s_waitcnt lgkmcnt(0)")
    g.label("L_k1_sums_done")
    g("s_barrier")
    g("s_cmp_ge_u32 s16, 2")
    g("s_cbranch_scc1 L_k1_pub_done")
    g("v_lshlrev_b32 v2, 4, v0")
    for wr in range(2):
        g("ds_read_b128 v[%d:%d], v2 offset:%d" % (T + 32 - 16 + wr * 4, T + 35 - 16 + wr * 4, RED1 + wr * 2048))
    g("s_waitcnt lgkmcnt(0)")
    for wr in range(2):
        b = T + 16 + wr * 4
        if wr == 0:
            g("v_add_f32 v%d, v%d, v%d" % (T, b, b + 2))
            g("v_add_f32 v%d, v%d, v%d" % (T + 1, b + 1, b + 3))
        else:
            g("v_add_f32 v%d, v%d, v%d" % (b, b, b + 2))
            g("v_add_f32 v%d, v%d, v%d" % (b + 1, b + 1, b + 3))
            g("v_add_f32 v%d, v%d, v%d" % (T, T, b))
            g("v_add_f32 v%d, v%d, v%d" % (T + 1, T + 1, b + 1))
    g("s_lshl_b32 s3, s20, 9")
    g("s_lshl_b32 s27, s19, 7")
    g("s_add_u32 s3, s3, s27")
    g("s_lshl_b32 s3, s3, 3")
    g("s_add_u32 s3, s3, %d" % WS_PART)
    g("v_lshlrev_b32 v2, 3, v0")
    g("buffer_store_dwordx2 v[%d:%d], v2, s[12:15], s3 offen sc1" % (T, T + 1))
    g("s_waitcnt vmcnt(0)")
    g.label("L_k1_pub_done")
    g("s_barrier")
    stamp(g, 3)
    g("s_lshl_b32 s47, s21, 2")
    g("s_add_u32 s47, s47, s19")
    g("s_lshl_b32 s47, s47, 5")
    g("s_cmp_lg_u32 s16, 0")
    g("s_cbranch_scc1 L_k1_waited")
    g("v_mov_b32 v2, s47")
    g("v_mov_b32 v5, 1")
    g("s_mov_b64 s[56:57], exec")
    g("s_mov_b64 exec, 1")
    g("global_atomic_add v2, v5, s[54:55] sc1")
    g("s_mov_b32 s58, 0")
    g.label("L_k1_poll")
    g("global_load_dword v6, v2, s[54:55] sc1")
    g("s_waitcnt vmcnt(0)")
    g("v_readfirstlane_b32 s3, v6")
    g("s_cmp_ge_u32 s3, 32")
    g("s_cbranch_scc1 L_k1_polled")
    g("s_sleep 1")
    g("s_add_u32 s58, s58, 1")
    g("s_cmp_lt_u32 s58, 200000")
    g("s_cbranch_scc1 L_k1_poll")
    g.label("L_k1_polled")
    g("s_mov_b64 exec, s[56:57]")
    g.label("L_k1_waited")
    g("s_barrier")
    stamp(g, 4)
    g("v_lshrrev_b32 v2, 4, v0")
    g("v_and_b32 v5, 15, v0")
    g("v_lshlrev_b32 v6, 12, v2")
    g("v_lshl_add_u32 v6, v5, 6, v6")
    g("s_lshl_b32 s3, s21, 17")
    g("s_lshl_b32 s27, s19, 10")
    g("s_add_u32 s3, s3, s27")
    g("s_add_u32 s3, s3, %d" % WS_PART)
    for i in range(4):
        g("buffer_load_dwordx4 v[%d:%d], v6, s[12:15], s3 offen offset:%d sc1" % (T + 4 * i, T + 4 * i + 3, 16 * i))
    g("v_lshlrev_b32 v7, 10, v2")
    g("v_lshl_add_u32 v7, v5, 6, v7")
    g("s_waitcnt vmcnt(0)")
    for i in range(4):
        g("ds_write_b128 v7, v[%d:%d] offset:%d" % (T + 4 * i, T + 4 * i + 3, RED2 + 16 * i))
    g("s_waitcnt lgkmcnt(0)")
    g("s_barrier")
    g("v_and_b32 v5, 127, v0")
    g("v_lshrrev_b32 v2, 7, v0")
    g("v_lshlrev_b32 v7, 13, v2")
    g("v_lshl_add_u32 v7, v5, 3, v7")
    for i in range(8):
        g("ds_read_b64 v[%d:%d], v7 offset:%d" % (T + 2 * i, T + 2 * i + 1, RED2 + 1024 * i))
    g("s_waitcnt lgkmcnt(0)")
    for i in range(1, 8):
        g("v_add_f32 v%d, v%d, v%d" % (T, T, T + 2 * i))
        g("v_add_f32 v%d, v%d, v%d" % (T + 1, T + 1, T + 2 * i + 1))
    g("v_lshlrev_b32 v7, 10, v2")
    g("v_lshl_add_u32 v7, v5, 3, v7")
    g("ds_write_b64 v7, v[%d:%d] offset:%d" % (T, T + 1, RED3))
    g("s_waitcnt lgkmcnt(0)")
    g("s_barrier")
    g("s_lshl_b32 s3, s18, 6")
    g("v_and_b32 v2, 31, v1")
    g("v_add_u32 v2, s3, v2")
    g("v_lshlrev_b32 v2, 3, v2")
    for nbl in range(2):
        for qd in range(4):
            r = T + nbl * 8 + qd * 2
            g("ds_read_b64 v[%d:%d], v2 offset:%d" % (r, r + 1, RED3 + qd * 1024 + nbl * 256))
    g("s_waitcnt lgkmcnt(0)")
    g("s_mov_b32 s3, 0x%08x" % f32bits(1.0 / NVALID))
    g("s_mov_b32 s27, 0x%08x" % f32bits(1e-5))
    SC = [T + 16, T + 18]
    for nbl in range(2):
        r = T + nbl * 8
        for qd in range(1, 4):
            g("v_add_f32 v%d, v%d, v%d" % (r, r, r + 2 * qd))
            g("v_add_f32 v%d, v%d, v%d" % (r + 1, r + 1, r + 2 * qd + 1))
        g("v_mul_f32 v%d, s3, v%d" % (r, r))
        g("v_mul_f32 v%d, s3, v%d" % (r + 1, r + 1))
        g("v_fma_f32 v%d, -v%d, v%d, v%d" % (r + 1, r, r, r + 1))
        g("v_max_f32 v%d, 0, v%d" % (r + 1, r + 1))
        g("v_add_f32 v%d, s27, v%d" % (r + 1, r + 1))
        g("v_rsq_f32 v%d, v%d" % (r + 1, r + 1))
        g("v_lshlrev_b32 v%d, 16, v%d" % (12 + nbl, 12 + nbl))
        g("v_lshlrev_b32 v%d, 16, v%d" % (14 + nbl, 14 + nbl))
        g("v_mul_f32 v%d, v%d, v%d" % (SC[nbl], 12 + nbl, r + 1))
        g("v_fma_f32 v%d, -v%d, v%d, v%d" % (SC[nbl] + 1, r, SC[nbl], 14 + nbl))
    stamp(g, 5)
    g("s_cmp_ge_u32 s16, 4")
    g("s_cbranch_scc1 L_k1_end")
    g("s_mul_i32 s3, s21, %d" % NVALID)
    g("s_lshl_b32 s27, s22, 8")
    g("s_add_u32 s3, s3, s27")
    g("s_lshl_b32 s27, s17, 7")
    g("s_add_u32 s3, s3, s27")
    g("s_lshl_b32 s44, s3, 10")
    g("v_lshlrev_b32 v4, 2, v3")
    g("v_and_b32 v5, 1, v1")
    g("v_add_u32 v4, v4, v5")
    g("v_lshlrev_b32 v8, 10, v4")
    g("s_lshl_b32 s3, s19, 7")
    g("s_lshl_b32 s27, s18, 6")
    g("s_add_u32 s3, s3, s27")
    g("v_and_b32 v6, 30, v1")
    g("v_add_u32 v6, s3, v6")
    g("v_lshlrev_b32 v6, 1, v6")
    g("v_add_u32 v8, v8, v6")
    g("s_lshl_b32 s3, s17, 7")
    g("v_add_u32 v4, s3, v4")
    g("v_mov_b32 v7, 0x05040100")
    g("v_mov_b32 v9, 0x03020706")
    g("v_cmp_eq_u32 vcc, 1, v5")
    g("s_nop 1")
    g("v_cndmask_b32 v7, v7, v9, vcc")
    g("s_mov_b32 s60, 0x%08x" % f32bits(-2.0 * 1.4426950408889634 * 0.7978845608028654 * 0.044715))
    g("v_mov_b32 v9, 0x%08x" % f32bits(-2.0 * 1.4426950408889634 * 0.7978845608028654))
    W = 16
    for mb in range(NMB):
        for nbl in range(2):
            a0 = acc(mb, nbl)
            for j in range(16):
                g("v_fma_f32 v%d, v%d, v%d, v%d" % (a0 + j, a0 + j, SC[nbl], SC[nbl] + 1))
            for j in range(16):
                g("v_mul_f32 v%d, v%d, v%d" % (W + j, a0 + j, a0 + j))
            for j in range(16):
                g("v_fma_f32 v%d, v%d, s60, v9" % (W + j, W + j))
            for j in range(16):
                g("v_mul_f32 v%d, v%d, v%d" % (W + j, W + j, a0 + j))
            for j in range(16):
                g("v_exp_f32 v%d, v%d" % (W + j, W + j))
            for j in range(16):
                g("v_add_f32 v%d, 1.0, v%d" % (W + j, W + j))
            for j in range(16):
                g("v_rcp_f32 v%d, v%d" % (W + j, W + j))
            for j in range(16):
                g("v_mul_f32 v%d, v%d, v%d" % (a0 + j, a0 + j, W + j))
            for jj in range(4):
                g("s_add_u32 s45, s44, %d" % (mb * 32768 + jj * 8192))
                for j2 in (0, 2):
                    r = a0 + jj * 4 + j2
                    p = W + 16 + ((jj * 2 + j2 // 2) % 8) * 2
                    n = p + 1
                    g("v_cvt_pk_bf16_f32 v%d, v%d, v%d" % (p, r, r + 1))
                    g("s_nop 1")
                    g("v_mov_b32_dpp v%d, v%d quad_perm:[1,0,3,2] row_mask:0xf bank_mask:0xf" % (n, p))
                    g("v_perm_b32 v%d, v%d, v%d, v7" % (p, n, p))
                    c = mb * 32 + jj * 8 + j2
                    g("v_add_u32 v2, %d, v4" % c)
                    g("v_cmp_gt_u32 vcc, s46, v2")
                    g("s_and_saveexec_b64 s[56:57], vcc")
                    g("buffer_store_dword v%d, v8, s[64:67], s45 offen offset:%d" % (p, j2 * 1024 + nbl * 64))
                    g("s_mov_b64 exec, s[56:57]")
    stamp(g, 6)
    stamp_dump(g, 7)


def main(path):
    g = G()
    hdr = open("cdna_kernels/%s.s.ref" % NAME).read().split("\n")
    for l in hdr:
        if l.startswith(";") and "@launch" not in l and "Override" not in l and "grid=ceil" not in l:
            g.raw(l)
    g.raw("; @launch grid=(256,1,1) block=(512,1,1) lds=%d" % LDS_TOTAL)
    g.raw('.amdgcn_target "amdgcn-amd-amdhsa--gfx950"')
    g.raw(".text")
    gen_k1(g)
    open(path, "w").write(g.text())


if __name__ == "__main__":
    main(sys.argv[1] if len(sys.argv) > 1 else "cdna_kernels/%s.s" % NAME)
```
